```python
import torch

def _softmax(x, axis=-1):
    return torch.softmax(x, dim=axis)
def _gelu(x):
    return torch.nn.functional.gelu(x, approximate="tanh")
def _silu(x):
    return torch.nn.functional.silu(x)
def _sigmoid(x):
    return torch.sigmoid(x)
def _layernorm(x, axis=-1, eps=1e-5):
    m = x.mean(dim=axis, keepdim=True)
    v = x.var(dim=axis, keepdim=True, unbiased=False)
    return (x - m) / torch.sqrt(v + eps)
def _scatter_add(tgt, idx, src, axis=0):
    return tgt.clone().index_add_(axis, idx, src)
def _segment_sum(src, seg, n):
    out = torch.zeros((n,) + src.shape[1:], dtype=src.dtype)
    return out.index_add_(0, seg, src)
def _pad(x, pw):
    flat = tuple(v for pair in reversed(pw) for v in pair)
    return torch.nn.functional.pad(x, flat)

kernel_name = 'concat_heads__gqa_block_cached__sliding_block_cached__decode'

def setup_inputs():

    _w = (lambda a: (lambda t: t.to(torch.bfloat16) if t.is_floating_point() else t)(torch.as_tensor(a)))
    def _A_setup():
        B, Sq, D = 1, 1, 448
        Hq, Hkv, Sk, Dh = 16, 8, 8192, 256
        assert Hq % Hkv == 0, (Hq, Hkv)
        return {
            "x": _w((lambda *s: torch.randn(*s, dtype=torch.bfloat16) * 0.8)(B, Sq, D)),
            "k_cache": _w((lambda *s: torch.randn(*s, dtype=torch.bfloat16) * 1.6)(B, Hkv, Sk, Dh)),
            "v_cache": _w((lambda *s: torch.randn(*s, dtype=torch.bfloat16) * 0.2)(B, Hkv, Sk, Dh)),
            "wq": _w((lambda *s: torch.randn(*s, dtype=torch.bfloat16) * 1.6)(D, Hq * Dh) * (D ** -0.5)),
            "wo": _w((lambda *s: torch.randn(*s, dtype=torch.bfloat16) * 0.2)(Hq * Dh, D) * ((Hq * Dh) ** -0.5)),
        }
    _A_in = _A_setup()

    def _B_setup():
        B, Sq, D = 1, 1, 448
        Hq, Hkv, Sk, Dh = 16, 8, 8192, 256
        assert Hq % Hkv == 0, (Hq, Hkv)
        return {
            "x": _w((lambda *s: torch.randn(*s, dtype=torch.bfloat16) * 0.8)(B, Sq, D)),
            "k_cache": _w((lambda *s: torch.randn(*s, dtype=torch.bfloat16) * 1.6)(B, Hkv, Sk, Dh)),
            "v_cache": _w((lambda *s: torch.randn(*s, dtype=torch.bfloat16) * 0.2)(B, Hkv, Sk, Dh)),
            "wq": _w((lambda *s: torch.randn(*s, dtype=torch.bfloat16) * 1.6)(D, Hq * Dh) * (D ** -0.5)),
            "wo": _w((lambda *s: torch.randn(*s, dtype=torch.bfloat16) * 0.2)(Hq * Dh, D) * ((Hq * Dh) ** -0.5)),
        }
    _B_in = _B_setup()

    return {
        "A_x": _A_in["x"],
        "A_k_cache": _A_in["k_cache"],
        "A_v_cache": _A_in["v_cache"],
        "A_wq": _A_in["wq"],
        "A_wo": _A_in["wo"],
        "B_x": _B_in["x"],
        "B_k_cache": _B_in["k_cache"],
        "B_v_cache": _B_in["v_cache"],
        "B_wq": _B_in["wq"],
        "B_wo": _B_in["wo"],
    }

def reference(A_x, A_k_cache, A_v_cache, A_wq, A_wo, B_x, B_k_cache, B_v_cache, B_wq, B_wo):
    def _A_ref(x, k_cache, v_cache, wq, wo):
        B, Sq, D = x.shape
        Hq, Dh = 16, 256
        Hkv = k_cache.shape[1]
        rep = Hq // Hkv
        q = (lambda x, *d: x.permute(*d))((x @ wq).reshape(B, Sq, Hq, Dh), 0, 2, 1, 3)
        k = (lambda x, n, axis: torch.repeat_interleave(x, n, dim=axis))(k_cache, rep, axis=1)
        v = (lambda x, n, axis: torch.repeat_interleave(x, n, dim=axis))(v_cache, rep, axis=1)
        scores = torch.einsum("bhqd,bhkd->bhqk", q, k) * (Dh ** -0.5)
        p = _softmax(scores, axis=-1)
        o = torch.einsum("bhqk,bhkd->bhqd", p, v)
        return (lambda x, *d: x.permute(*d))(o, 0, 2, 1, 3).reshape(B, Sq, Hq * Dh) @ wo

    def _B_ref(x, k_cache, v_cache, wq, wo):
        B, Sq, D = x.shape
        Hq, Dh = 16, 256
        Hkv, Sk = k_cache.shape[1], k_cache.shape[2]
        W = min(4096, max(256, Sk // 4))
        rep = Hq // Hkv
        q = (lambda x, *d: x.permute(*d))((x @ wq).reshape(B, Sq, Hq, Dh), 0, 2, 1, 3)
        k = (lambda x, n, axis: torch.repeat_interleave(x, n, dim=axis))(k_cache[:, :, Sk - W:, :], rep, axis=1)
        v = (lambda x, n, axis: torch.repeat_interleave(x, n, dim=axis))(v_cache[:, :, Sk - W:, :], rep, axis=1)
        scores = torch.einsum("bhqd,bhkd->bhqk", q, k) * (Dh ** -0.5)
        p = _softmax(scores, axis=-1)
        o = torch.einsum("bhqk,bhkd->bhqd", p, v)
        return (lambda x, *d: x.permute(*d))(o, 0, 2, 1, 3).reshape(B, Sq, Hq * Dh) @ wo

    a = _A_ref(A_x, A_k_cache, A_v_cache, A_wq, A_wo)
    b = _B_ref(B_x, B_k_cache, B_v_cache, B_wq, B_wo)
    return torch.concatenate([a, b], axis=-1)
```

```python
import sys, struct
NAME = "concat_heads__gqa_block_cached__sliding_block_cached__decode"
def f2u(x): return struct.unpack("<I", struct.pack("<f", x))[0]
HEADER = open("cdna_kernels/" + NAME + ".s.ref").read().split("; Override launch")[0]

WS_EPOCH = 0
WS_QG = 0x10000
WS_OG = 0x100000
OG_REC = 4608
WS_FG = 0x300000
WS_ALT = 0x400000
WS_STAMP = 128 << 20
L_Q = 0
L_M = 2048
L_L = 2064
L_OB = 2080
L_O = 4096
LDS_BYTES = 4096 + 20480
CEXP = 1.4426950408889634 / 16.0
SPIN_MAX = 200000

def gen(stamps=False, kvpol="nt", wpol="nt", sleep=0, stampwave=1, win=4, preV=4, b0=True, dual=False):
    L = []
    A = L.append
    def nop(n):
        if n > 0: A(f"s_nop {n-1}")
    def stamp(i):
        if stamps: A(f"s_memrealtime s[{70+2*i}:{71+2*i}]")
    def dump_stamps(off):
        A("s_waitcnt lgkmcnt(0)")
        A("s_lshl_b32 s64, s2, 7")
        A(f"s_add_u32 s64, s64, {WS_STAMP + off}")
        for i in range(16):
            A(f"v_mov_b32 v{20+i}, s{70+i}")
        A("v_mov_b32 v16, 0")
        A("s_mov_b64 exec, 1")
        for i in range(4):
            A(f"buffer_store_dwordx4 v[{20+4*i}:{23+4*i}], v16, s[40:43], s64 offen offset:{16*i}")
        A("s_mov_b64 exec, -1")
    def tagcheck(regs, ok, again, slp, flip=()):
        A(f"v_xor_b32 v16, s50, v{regs[0]}")
        for r in regs[1:]:
            A(f"v_bitop3_b32 v16, v16, v{r}, s50 bitop3:0xf6")
        A("v_cmp_ne_u32 vcc, 0, v16")
        A("s_cmp_eq_u64 vcc, 0")
        A(f"s_cbranch_scc1 {ok}")
        if slp: A(f"s_sleep {slp}")
        A("s_sub_u32 s66, s66, 1")
        if flip:
            A("s_and_b32 s69, s66, 3")
            A("s_cmp_eq_u32 s69, 0")
            A(f"s_cselect_b32 s69, 0, {WS_ALT}")
            for (dst, base) in flip:
                A(f"s_add_u32 {dst}, {base}, s69")
        A("s_cmp_lg_u32 s66, 0")
        A(f"s_cbranch_scc1 {again}")
        A("s_branch L_end")
    def uadd(d, o):
        for r in range(4):
            A(f"v_mov_b32_dpp v{d+r}, v{d+r} row_ror:8 row_mask:0xc bank_mask:0xf")
        nop(1)
        A(f"v_permlane32_swap_b32 v{d}, v{d+2}")
        A(f"v_permlane32_swap_b32 v{d+1}, v{d+3}")
        A(f"v_add_f32 v{o}, v{d}, v{d+2}")
        A(f"v_add_f32 v{o+2}, v{d+1}, v{d+3}")
    def masks():
        A("v_and_b32 v3, 1, v0")
        A("v_cmp_eq_u32 vcc, 1, v3")
        A("v_mov_b32 v16, 0xffff")
        A("v_mov_b32 v17, 0xffff0000")
        A("v_cndmask_b32 v16, v16, v17, vcc")
        A("v_bfe_u32 v3, v0, 1, 2")
        for k in range(4):
            A(f"v_cmp_eq_u32 vcc, {k}, v3")
            nop(2)
            A(f"v_cndmask_b32 v{4+k}, 0, v16, vcc")
    def publish(data, voff, soff):
        if dual:
            A(f"s_add_u32 s69, {soff}, {WS_ALT}")
            A(f"buffer_store_dwordx4 {data}, {voff}, s[40:43], s69 offen")
        A(f"buffer_store_dwordx4 {data}, {voff}, s[40:43], {soff} offen sc1")

    A(HEADER.rstrip("\n"))
    A(f"; @launch grid=(256,1,1) block=(704,1,1) lds={LDS_BYTES}")
    A('.amdgcn_target "amdgcn-amd-amdhsa--gfx950"')
    A(".text")
    A(f".globl {NAME}_kernel")
    A(".p2align 8")
    A(f".type {NAME}_kernel,@function")
    A(f"{NAME}_kernel:")
    A("s_cmp_ge_u32 s2, 256")
    A("s_cbranch_scc1 L_end")
    stamp(0)
    A("s_load_dwordx16 s[4:19], s[0:1], 0")
    A("s_load_dwordx8 s[20:27], s[0:1], 64")
    A("s_load_dwordx2 s[28:29], s[0:1], 96")
    A("v_lshrrev_b32 v1, 6, v0")
    A("v_and_b32 v0, 63, v0")
    A("v_readfirstlane_b32 s30, v1")
    A("s_and_b32 s31, s2, 7")
    A("s_lshr_b32 s48, s2, 3")
    A("v_lshrrev_b32 v1, 4, v0")
    A("v_and_b32 v2, 15, v0")
    A("s_cmp_eq_u32 s30, 0")
    A("s_cbranch_scc1 L_helper")

    A("s_mul_i32 s49, s48, 320")
    A("s_lshl_b32 s51, s30, 5")
    A("s_add_u32 s49, s49, s51")
    A("s_sub_u32 s49, s49, 32")
    A("v_lshlrev_b32 v8, 9, v2")
    A("v_lshl_add_u32 v8, v1, 4, v8")
    A("v_lshlrev_b32 v9, 4, v2")
    A("v_lshl_add_u32 v9, v1, 11, v9")
    A("s_mov_b32 s34, 0x2000000")
    A("s_mov_b32 s35, 0x20000")
    A("s_mov_b32 s38, 0x2000000")
    A("s_mov_b32 s39, 0x20000")
    A("s_cmp_lt_u32 s49, 8192")
    A("s_cselect_b32 s52, 0, 1")
    A("s_cselect_b32 s51, 0, 2048")
    A("s_waitcnt lgkmcnt(0)")
    A("s_cselect_b32 s32, s6, s16")
    A("s_cselect_b32 s33, s7, s17")
    A("s_cselect_b32 s36, s8, s18")
    A("s_cselect_b32 s37, s9, s19")
    A("s_sub_u32 s49, s49, s51")
    A("s_lshl_b32 s49, s49, 9")
    A("s_lshl_b32 s51, s31, 22")
    A("s_add_u32 s49, s49, s51")
    A("s_add_u32 s51, s49, 8192")
    KB = 40; VB = 104
    kloads = []; vloads = []
    for T in range(2):
        for t in range(8):
            r = KB + (T*8+t)*4
            kloads.append(f"buffer_load_dwordx4 v[{r}:{r+3}], v8, s[32:35], {'s49' if T==0 else 's51'} offen offset:{t*64} {kvpol}")
    for T in range(2):
        for r_ in range(4):
            for hf in range(2):
                r = VB + (T*8 + r_*2 + hf)*4
                vloads.append(f"buffer_load_dwordx4 v[{r}:{r+3}], v9, s[36:39], {'s49' if T==0 else 's51'} offen offset:{r_*512+hf*256} {kvpol}")
    first = kloads + vloads[:preV]
    rest = vloads[preV:]
    A(f"s_load_dword s50, s[28:29], {WS_EPOCH}")
    if b0: A("s_barrier")
    for x in first[:win]: A(x)
    first = first[win:]
    masks()
    A("s_mov_b32 s40, s28")
    A("s_mov_b32 s41, s29")
    A("s_mov_b32 s42, 0x10000000")
    A("s_mov_b32 s43, 0x20000")
    A("s_sub_u32 s57, s30, 1")
    A("s_cmp_lt_u32 s48, 16")
    A("s_cselect_b32 s44, s12, s22")
    A("s_cselect_b32 s45, s13, s23")
    A("s_cmp_lt_u32 s57, 7")
    A("s_cselect_b32 s46, 3670016, 0")
    A("s_mov_b32 s47, 0x20000")
    A("s_and_b32 s67, s48, 15")
    A("s_lshl_b32 s68, s31, 4")
    A("s_add_u32 s67, s67, s68")
    A("s_mul_i32 s68, s67, 28672")
    A("s_lshl_b32 s69, s57, 7")
    A("s_add_u32 s68, s68, s69")
    A("s_lshl_b32 s67, s67, 5")
    A("s_lshr_b32 s69, s48, 4")
    A("s_mul_i32 s69, s69, 458752")
    A("s_add_u32 s67, s67, s69")
    A("s_lshl_b32 s69, s57, 16")
    A("s_add_u32 s67, s67, s69")
    A(f"s_add_u32 s67, s67, {WS_FG}")
    A("v_lshrrev_b32 v3, 3, v2")
    A("s_lshl_b32 s53, s52, 10")
    A("v_lshlrev_b32 v10, 9, v3")
    A("v_lshl_add_u32 v10, v1, 4, v10")
    A("v_add_u32 v10, s53, v10")
    A("s_lshl_b32 s53, s52, 3")
    A(f"s_add_u32 s53, s53, {L_M}")
    A("v_lshl_add_u32 v11, v3, 2, s53")
    A("s_lshl_b32 s53, s57, 11")
    A(f"s_add_u32 s53, s53, {L_O}")
    A("v_lshl_add_u32 v12, v0, 4, s53")
    A("s_cmp_ge_u32 s48, 26")
    A("s_cselect_b32 s58, 1, 0")
    A("s_add_u32 s59, s48, s58")
    A("s_cmp_ge_u32 s57, 4")
    A("s_cselect_b32 s60, 1, 0")
    A("s_add_u32 s58, s58, s60")
    A("s_add_u32 s59, s59, s60")
    A("s_and_b32 s60, s57, 3")
    A("s_lshr_b32 s61, s60, 1")
    A("s_and_b32 s62, s60, 1")
    A("v_and_b32 v13, 1, v0")
    A("v_lshlrev_b32 v13, 3, v13")
    A("v_bfe_u32 v14, v0, 1, 1")
    A("v_lshl_add_u32 v13, v14, 8, v13")
    A("v_lshrrev_b32 v14, 2, v0")
    A("v_lshl_add_u32 v13, v14, 4, v13")
    A("s_lshl_b32 s63, s62, 10")
    A("s_lshl_b32 s64, s61, 9")
    A("s_add_u32 s63, s63, s64")
    A(f"s_add_u32 s63, s63, {L_O}")
    A("v_add_u32 v13, s63, v13")
    A("v_lshlrev_b32 v14, 4, v0")
    A("v_lshrrev_b32 v15, 3, v0")
    A("v_lshlrev_b32 v15, 3, v15")
    A("s_mul_i32 s64, s31, 40")
    A("s_add_u32 s64, s64, s59")
    A(f"s_mul_i32 s64, s64, {OG_REC}")
    A(f"s_add_u32 s64, s64, {WS_OG}")
    A("s_lshl_b32 s65, s60, 10")
    A("s_add_u32 s65, s65, s64")
    for x in first:
        A(f"s_waitcnt vmcnt({win-1})")
        A(x)
    stamp(1)
    A("s_waitcnt lgkmcnt(0)")
    A("s_mul_i32 s50, s50, 0x9E3779B1")
    A("s_add_u32 s50, s50, 0x7F4A7C15")
    A("s_barrier")
    stamp(2)
    for x in rest: A(x)
    QB = 16; SB = 32
    for hq in range(2):
        for t in range(4):
            A(f"ds_read_b128 v[{QB+4*t}:{QB+4*t+3}], v10 offset:{(hq*4+t)*64}")
        if hq == 0: A("s_waitcnt vmcnt(16)")
        A("s_waitcnt lgkmcnt(0)")
        for T in range(2):
            for t in range(4):
                r = KB + (T*8 + hq*4 + t)*4
                c = "0" if (hq == 0 and t == 0) else f"v[{SB+4*T}:{SB+4*T+3}]"
                A(f"v_mfma_f32_16x16x32_bf16 v[{SB+4*T}:{SB+4*T+3}], v[{r}:{r+3}], v[{QB+4*t}:{QB+4*t+3}], {c}")
    stamp(3)
    A("v_lshrrev_b32 v3, 3, v0")
    A("v_and_b32 v28, 7, v0")
    A("v_mul_u32_u24 v8, 3584, v3")
    A("v_lshl_add_u32 v8, v28, 4, v8")
    A("v_lshlrev_b32 v9, 13, v28")
    A("v_and_b32 v28, 1, v1")
    A("v_lshl_add_u32 v9, v28, 12, v9")
    A("v_lshrrev_b32 v28, 5, v0")
    A("v_lshl_add_u32 v9, v28, 4, v9")
    WO = 72
    for rg in range(4):
        A(f"buffer_load_dwordx4 v[{WO+4*rg}:{WO+4*rg+3}], v8, s[44:47], s68 offen offset:{rg*896} {wpol}")
    for i in range(4):
        A(f"v_cvt_pk_bf16_f32 v{24+i}, v{SB+2*i}, v{SB+2*i+1}")
    for i in range(4):
        A(f"v_lshlrev_b32 v{16+2*i}, 16, v{24+i}")
        A(f"v_and_b32 v{17+2*i}, 0xffff0000, v{24+i}")
    A("v_max3_f32 v24, v16, v17, v18")
    A("v_max3_f32 v25, v19, v20, v21")
    A("v_max3_f32 v24, v24, v22, v23")
    A("v_max_f32 v24, v24, v25")
    A("s_mov_b32 s54, 0x01010101")
    A("s_mov_b32 s55, 0x01010101")
    A("s_mov_b64 exec, s[54:55]")
    A("ds_max_f32 v11, v24")
    A("s_mov_b64 exec, -1")
    A("s_waitcnt lgkmcnt(0)")
    A("s_barrier")
    A("ds_read_b32 v24, v11")
    A(f"s_mov_b32 s56, {f2u(CEXP):#x}")
    A("s_waitcnt lgkmcnt(0)")
    A("v_mul_f32 v24, s56, v24")
    for i in range(8):
        A(f"v_fma_f32 v{16+i}, v{16+i}, s56, -v24")
    for i in range(8):
        A(f"v_exp_f32 v{16+i}, v{16+i}")
    nop(1)
    A("v_add_f32 v24, v16, v17")
    A("v_add_f32 v25, v18, v19")
    A("v_add_f32 v26, v20, v21")
    A("v_add_f32 v27, v22, v23")
    A("v_add_f32 v24, v24, v25")
    A("v_add_f32 v26, v26, v27")
    A("v_add_f32 v24, v24, v26")
    A("s_mov_b64 exec, s[54:55]")
    A("ds_add_f32 v11, v24 offset:16")
    A("s_mov_b64 exec, -1")
    for i in range(8):
        A(f"v_cvt_pk_bf16_f32 v{16+i}, v{16+i}, v{16+i}")
    for i in range(8):
        for k in range(4):
            A(f"v_and_b32 v{KB+4*i+k}, v{16+i}, v{4+k}")
    A("v_mov_b32 v17, s50")
    A("v_mov_b32 v19, s50")
    stamp(4)
    OB = 32
    for i in range(8):
        A(f"s_waitcnt vmcnt({18-2*i})")
        for hf in range(2):
            r = VB + (i*2+hf)*4
            c = "0" if i == 0 else f"v[{OB+4*hf}:{OB+4*hf+3}]"
            A(f"v_mfma_f32_16x16x32_bf16 v[{OB+4*hf}:{OB+4*hf+3}], v[{KB+4*i}:{KB+4*i+3}], v[{r}:{r+3}], {c}")
    stamp(5)
    nop(7)
    A(f"ds_write_b128 v12, v[{OB}:{OB+3}]")
    A(f"ds_write_b128 v12, v[{OB+4}:{OB+7}] offset:1024")
    A("s_waitcnt lgkmcnt(0)")
    A("s_barrier")
    A("s_cmp_ge_u32 s57, 8")
    A("s_cbranch_scc1 L_pub_ml")
    A("s_cmp_eq_u32 s48, 25")
    A("s_cbranch_scc1 L_pub_str")
    A("s_cmp_lt_u32 s57, 4")
    A("s_cbranch_scc0 L_kv_done")
    def pub_o(lo, hi):
        n = hi - lo
        for w in range(lo, hi):
            A(f"ds_read_b64 v[{40+2*(w-lo)}:{41+2*(w-lo)}], v13 offset:{w*2048}")
        regs = [40 + 2*i for i in range(n)]
        A("s_waitcnt lgkmcnt(0)")
        while len(regs) > 2:
            nxt = []
            for i in range(0, len(regs) - 1, 2):
                A(f"v_pk_add_f32 v[{regs[i]}:{regs[i]+1}], v[{regs[i]}:{regs[i]+1}], v[{regs[i+1]}:{regs[i+1]+1}]")
                nxt.append(regs[i])
            if len(regs) & 1: nxt.append(regs[-1])
            regs = nxt
        A(f"v_add_f32 v16, v{regs[0]}, v{regs[1]}")
        A(f"v_add_f32 v18, v{regs[0]+1}, v{regs[1]+1}")
        publish("v[16:19]", "v14", "s65")
        A("s_branch L_kv_done")
    pub_o(0, 10)
    A("L_pub_str:")
    A("s_cmp_lt_u32 s57, 4")
    A("s_cbranch_scc0 L_pub_str2")
    pub_o(0, 6)
    A("L_pub_str2:")
    pub_o(6, 10)
    A("L_pub_ml:")
    A("s_cmp_eq_u32 s57, 8")
    A("s_cbranch_scc1 L_ml_a")
    A("s_cmp_eq_u32 s48, 25")
    A("s_cbranch_scc0 L_end")
    A("s_branch L_ml_b")
    A("L_ml_a:")
    A("s_sub_u32 s58, s58, 1")
    A(f"s_sub_u32 s64, s64, {OG_REC}")
    A("L_ml_b:")
    A("s_lshl_b32 s63, s58, 3")
    A(f"s_add_u32 s63, s63, {L_M}")
    A("v_and_b32 v13, 1, v1")
    A("v_lshl_add_u32 v13, v13, 2, s63")
    A("ds_read2_b32 v[20:21], v13 offset0:0 offset1:4")
    A("s_add_u32 s64, s64, 4096")
    A("s_mov_b32 exec_hi, 0")
    A("s_waitcnt lgkmcnt(0)")
    A("v_mov_b32 v16, v20")
    A("v_mov_b32 v18, v21")
    publish("v[16:19]", "v14", "s64")
    A("s_branch L_end")
    A("L_kv_done:")
    stamp(6)
    A("s_cmp_lt_u32 s57, 7")
    A("s_cbranch_scc0 L_end")
    A("s_mov_b32 s58, 0x01000100")
    A("s_mov_b32 s59, 0x03020302")
    A("s_mov_b32 s60, 0x00ff00ff")
    A("s_mov_b32 s61, 0x00ff00ff")
    A("v_mov_b32 v25, s50")
    A("v_mov_b32 v27, s50")
    A("s_waitcnt vmcnt(0)")
    A("s_barrier")
    A(f"ds_read_b64 v[20:21], v15 offset:{L_OB}")
    A("s_waitcnt lgkmcnt(0)")
    for rg in range(4):
        A(f"v_perm_b32 v22, v{20+rg//2}, v{20+rg//2}, {'s59' if rg&1 else 's58'}")
        for k in range(4):
            A(f"v_and_b32 v{40+4*rg+k}, v22, v{4+k}")
    for rg in range(4):
        c = "0" if rg == 0 else "v[32:35]"
        A(f"v_mfma_f32_16x16x32_bf16 v[32:35], v[{40+4*rg}:{43+4*rg}], v[{WO+4*rg}:{WO+4*rg+3}], {c}")
    nop(8)
    uadd(32, 24)
    A("s_mov_b64 exec, s[60:61]")
    A("buffer_store_dwordx4 v[24:27], v9, s[40:43], s67 offen sc1")
    if stamps:
        A("s_mov_b64 exec, -1")
        stamp(7)
        A(f"s_cmp_eq_u32 s30, {stampwave}")
        A("s_cbranch_scc0 L_end")
        dump_stamps(64)
    A("s_branch L_end")

    A("L_helper:")
    A("s_setprio 3")
    A("s_lshr_b32 s52, s48, 4")
    A("s_and_b32 s53, s48, 1")
    A("s_bfe_u32 s54, s48, 0x30001")
    A("v_lshrrev_b32 v3, 3, v0")
    A("v_and_b32 v13, 7, v0")
    A("s_mov_b32 s55, 229376")
    A("v_mul_lo_u32 v8, v3, s55")
    A("v_lshl_add_u32 v8, v13, 4, v8")
    A("v_mul_u32_u24 v9, 56, v3")
    A("s_mul_i32 s55, s53, 1835008")
    A("s_lshl_b32 s56, s31, 10")
    A("s_add_u32 s55, s55, s56")
    A("s_lshl_b32 s56, s54, 7")
    A("s_add_u32 s55, s55, s56")
    A("s_mul_i32 s56, s53, 448")
    A("s_mov_b32 s34, 3670016")
    A("s_mov_b32 s35, 0x20000")
    A("s_mov_b32 s38, 896")
    A("s_mov_b32 s39, 0x20000")
    A("s_cmp_eq_u32 s52, 0")
    A("s_waitcnt lgkmcnt(0)")
    A("s_cselect_b32 s32, s10, s20")
    A("s_cselect_b32 s33, s11, s21")
    A("s_cselect_b32 s36, s4, s14")
    A("s_cselect_b32 s37, s5, s15")
    XB = 24; WB = 56
    for i in range(7):
        A(f"buffer_load_dwordx2 v[{XB+2*i}:{XB+2*i+1}], v9, s[36:39], s56 offen offset:{8*i}")
    for t in range(28):
        A(f"buffer_load_dwordx4 v[{WB+4*t}:{WB+4*t+3}], v8, s[32:35], s55 offen {wpol}")
        if t < 27: A("s_add_u32 s55, s55, 8192")
    if b0: A("s_barrier")
    stamp(1)
    A(f"s_load_dword s50, s[28:29], {WS_EPOCH}")
    masks()
    A("s_mov_b32 s40, s28")
    A("s_mov_b32 s41, s29")
    A("s_mov_b32 s42, 0x10000000")
    A("s_mov_b32 s43, 0x20000")
    A("v_mov_b32 v16, 0")
    A("v_mov_b32 v17, 0")
    A("v_mov_b32 v18, 0")
    A("v_mov_b32 v19, 0")
    A("v_lshlrev_b32 v14, 4, v0")
    A("v_mov_b32 v20, 0xff800000")
    A("v_mov_b32 v21, 0xff800000")
    A("v_mov_b32 v22, 0xff800000")
    A("v_mov_b32 v23, 0xff800000")
    A(f"ds_write_b128 v16, v[20:23] offset:{L_M}")
    A(f"ds_write_b128 v16, v[16:19] offset:{L_L}")
    A("s_mov_b32 s57, 0x01000100")
    A("s_mov_b32 s58, 0x03020302")
    A("s_waitcnt vmcnt(28)")
    AB = 40
    def build_a(t):
        b = AB + 4*(t & 1)
        A(f"v_perm_b32 v15, v{XB + t//2}, v{XB + t//2}, {'s58' if t & 1 else 's57'}")
        for k in range(4):
            A(f"v_and_b32 v{b+k}, v15, v{4+k}")
    build_a(0)
    for t in range(28):
        if t + 1 < 28: build_a(t + 1)
        else: nop(2)
        A(f"s_waitcnt vmcnt({27-t})")
        b = AB + 4*(t & 1)
        c = "0" if t == 0 else "v[48:51]"
        A(f"v_mfma_f32_16x16x32_bf16 v[48:51], v[{b}:{b+3}], v[{WB+4*t}:{WB+4*t+3}], {c}")
    stamp(2)
    A("s_waitcnt lgkmcnt(0)")
    A("s_mul_i32 s50, s50, 0x9E3779B1")
    A("s_add_u32 s50, s50, 0x7F4A7C15")
    A("s_lshl_b32 s55, s52, 3")
    A("s_add_u32 s55, s55, s31")
    A("s_lshl_b32 s55, s55, 1")
    A("s_add_u32 s55, s55, s53")
    A("s_lshl_b32 s55, s55, 12")
    A("s_lshl_b32 s56, s54, 9")
    A("s_add_u32 s55, s55, s56")
    A(f"s_add_u32 s55, s55, {WS_QG}")
    A("v_and_b32 v10, 1, v1")
    A("v_lshrrev_b32 v11, 5, v0")
    A("v_lshlrev_b32 v12, 6, v13")
    A("v_lshl_add_u32 v12, v10, 5, v12")
    A("v_lshl_add_u32 v12, v11, 4, v12")
    A("s_mov_b32 s60, 0x00ff00ff")
    A("s_mov_b32 s61, 0x00ff00ff")
    A("v_mov_b32 v17, s50")
    A("v_mov_b32 v19, s50")
    uadd(48, 16)
    A("s_mov_b64 exec, s[60:61]")
    publish("v[16:19]", "v12", "s55")
    A("s_mov_b64 exec, -1")
    A("s_cmp_ge_u32 s48, 26")
    A("s_cselect_b32 s62, 1, 0")
    A("v_lshlrev_b32 v15, 2, v0")
    A(f"s_mov_b32 s66, {SPIN_MAX}")
    A("L_q_next:")
    A("s_lshl_b32 s90, s62, 3")
    A("s_add_u32 s90, s90, s31")
    A("s_lshl_b32 s90, s90, 13")
    A(f"s_add_u32 s90, s90, {WS_QG}")
    A("s_add_u32 s91, s90, 4096")
    A(f"s_add_u32 s55, s90, {WS_ALT if dual else 0}")
    A(f"s_add_u32 s56, s91, {WS_ALT if dual else 0}")
    A("L_q_poll:")
    for t in range(8):
        A(f"buffer_load_dwordx4 v[{WB+4*t}:{WB+4*t+3}], v14, s[40:43], {'s55' if t<4 else 's56'} offen offset:{(t&3)*1024} sc1")
    A("s_waitcnt vmcnt(0)")
    tagcheck(list(range(WB+1, WB+32, 2)), "L_q_ok", "L_q_poll", 0, flip=(("s55", "s90"), ("s56", "s91")) if dual else ())
    A("L_q_ok:")
    A("s_lshl_b32 s55, s62, 10")
    A("v_add_u32 v16, s55, v15")
    for t in range(4):
        A(f"v_add_f32 v{WB+4*t}, v{WB+4*t}, v{WB+16+4*t}")
        A(f"v_add_f32 v{WB+4*t+2}, v{WB+4*t+2}, v{WB+16+4*t+2}")
        A(f"v_cvt_pk_bf16_f32 v{WB+4*t}, v{WB+4*t}, v{WB+4*t+2}")
        A(f"ds_write_b32 v16, v{WB+4*t} offset:{L_Q + 256*t}")
    A("s_waitcnt lgkmcnt(0)")
    A("s_cmp_eq_u32 s48, 25")
    A("s_cbranch_scc0 L_q_done")
    A("s_cmp_eq_u32 s62, 0")
    A("s_mov_b32 s62, 1")
    A("s_cbranch_scc1 L_q_next")
    A("L_q_done:")
    stamp(3)
    A("s_bfe_u32 s53, s48, 0x10003")
    A("s_and_b32 s54, s48, 7")
    A("s_cmp_eq_u32 s52, 0")
    A("s_cselect_b32 s62, 25, 6")
    A("s_cselect_b32 s63, 0, 26")
    A("s_mul_i32 s90, s31, 40")
    A("s_add_u32 s90, s90, s63")
    A(f"s_mul_i32 s90, s90, {OG_REC}")
    A(f"s_add_u32 s90, s90, {WS_OG}")
    A("s_lshl_b32 s91, s53, 8")
    A("s_add_u32 s91, s91, s90")
    A("s_add_u32 s91, s91, 4096")
    A("s_lshl_b32 s63, s53, 11")
    A("s_add_u32 s90, s90, s63")
    A("s_lshl_b32 s63, s54, 8")
    A("s_add_u32 s90, s90, s63")
    A(f"s_add_u32 s64, s90, {WS_ALT if dual else 0}")
    A(f"s_add_u32 s65, s91, {WS_ALT if dual else 0}")
    A("s_barrier")
    A("v_lshlrev_b32 v9, 4, v2")
    A("v_mov_b32 v17, 0xff800000")
    for t in range(7):
        A(f"v_add_u32 v16, {4*t}, v1")
        A(f"v_cmp_lt_u32 vcc, s62, v16")
        A(f"v_min_u32 v16, s62, v16")
        A(f"v_mul_u32_u24 v16, {OG_REC}, v16")
        A(f"v_cndmask_b32 v{32+t}, 0, v17, vcc")
        A(f"v_add_u32 v{24+t}, v16, v9")
    A("v_lshlrev_b32 v12, 2, v2")
    A("v_lshl_add_u32 v12, v11, 1, v12")
    A(f"s_mov_b32 s56, {f2u(CEXP):#x}")
    A(f"s_mov_b32 s66, {SPIN_MAX}")
    A("s_barrier")
    A("s_barrier")
    stamp(4)
    GO = 56; GM = 84
    A("L_c_poll:")
    for t in range(7):
        A(f"buffer_load_dwordx4 v[{GM+4*t}:{GM+4*t+3}], v{24+t}, s[40:43], s65 offen sc1")
        A(f"buffer_load_dwordx4 v[{GO+4*t}:{GO+4*t+3}], v{24+t}, s[40:43], s64 offen sc1")
    A("s_waitcnt vmcnt(0)")
    tagcheck(list(range(GO+1, GO+56, 2)), "L_c_ok", "L_c_poll", sleep, flip=(("s64", "s90"), ("s65", "s91")) if dual else ())
    A("L_c_ok:")
    stamp(5)
    if stamps: A("s_mov_b32 s92, s66")
    for t in range(7):
        A(f"v_add_f32 v{GM+4*t}, v{GM+4*t}, v{32+t}")
    A(f"v_max3_f32 v16, v{GM}, v{GM+4}, v{GM+8}")
    A(f"v_max3_f32 v17, v{GM+12}, v{GM+16}, v{GM+20}")
    A(f"v_max3_f32 v16, v16, v17, v{GM+24}")
    A("v_mov_b32 v17, v16")
    nop(2)
    A("v_permlane32_swap_b32 v16, v17")
    A("v_max_f32 v16, v16, v17")
    A("v_mov_b32 v17, v16")
    nop(2)
    A("v_permlane16_swap_b32 v16, v17")
    A("v_max_f32 v16, v16, v17")
    A("v_mul_f32 v16, s56, v16")
    for t in range(7):
        A(f"v_fma_f32 v{GM+4*t}, v{GM+4*t}, s56, -v16")
    for t in range(7):
        A(f"v_exp_f32 v{GM+4*t}, v{GM+4*t}")
    nop(1)
    A(f"v_mul_f32 v18, v{GM}, v{GO}")
    A(f"v_mul_f32 v19, v{GM}, v{GO+2}")
    A(f"v_mul_f32 v20, v{GM}, v{GM+2}")
    for t in range(1, 7):
        A(f"v_fmac_f32 v18, v{GM+4*t}, v{GO+4*t}")
        A(f"v_fmac_f32 v19, v{GM+4*t}, v{GO+4*t+2}")
        A(f"v_fmac_f32 v20, v{GM+4*t}, v{GM+4*t+2}")
    A("v_mov_b32 v21, v20")
    nop(1)
    A("v_permlane32_swap_b32 v18, v19")
    A("v_permlane32_swap_b32 v20, v21")
    A("v_add_f32 v18, v18, v19")
    A("v_add_f32 v20, v20, v21")
    A("v_mov_b32 v19, v18")
    A("v_mov_b32 v21, v20")
    nop(1)
    A("v_permlane16_swap_b32 v18, v19")
    A("v_permlane16_swap_b32 v20, v21")
    A("v_add_f32 v20, v20, v21")
    A("v_add_f32 v18, v18, v19")
    A("v_rcp_f32 v20, v20")
    nop(1)
    A("v_mul_f32 v18, v18, v20")
    A("v_cvt_pk_bf16_f32 v18, v18, v18")
    A(f"ds_write_b16 v12, v18 offset:{L_OB}")
    A("s_waitcnt lgkmcnt(0)")
    A("s_barrier")
    stamp(6)
    A("s_cmp_gt_u32 s2, 224")
    A("s_cbranch_scc1 L_fin_stamp")
    A("s_cmp_eq_u32 s2, 224")
    A("s_cbranch_scc1 L_updater")
    A("s_lshl_b32 s64, s2, 12")
    A(f"s_add_u32 s64, s64, {WS_FG}")
    A(f"s_mov_b32 s66, {SPIN_MAX}")
    A("s_mov_b32 s44, s24")
    A("s_mov_b32 s45, s25")
    A("s_mov_b32 s46, 1792")
    A("s_mov_b32 s47, 0x20000")
    A("v_and_b32 v12, 1, v0")
    A("v_lshlrev_b32 v12, 2, v12")
    A("v_lshl_add_u32 v12, v11, 1, v12")
    A("s_lshl_b32 s65, s2, 3")
    A("s_mov_b32 s54, 3")
    A("s_mov_b32 s55, 3")
    A("L_fin_poll:")
    for t in range(4):
        A(f"buffer_load_dwordx4 v[{20+4*t}:{23+4*t}], v14, s[40:43], s64 offen offset:{t*1024} sc1")
    A("s_waitcnt vmcnt(0)")
    tagcheck(list(range(21, 36, 2)), "L_fin_ok", "L_fin_poll", sleep)
    A("L_fin_ok:")
    A("v_add_f32 v20, v20, v24")
    A("v_add_f32 v22, v22, v26")
    A("v_add_f32 v28, v28, v32")
    A("v_add_f32 v30, v30, v34")
    A("v_add_f32 v20, v20, v28")
    A("v_add_f32 v22, v22, v30")
    nop(2)
    A("v_permlane32_swap_b32 v20, v22")
    A("v_add_f32 v20, v20, v22")
    A("v_mov_b32 v21, v20")
    nop(2)
    A("v_permlane16_swap_b32 v20, v21")
    A("v_add_f32 v20, v20, v21")
    for sh in (8, 4, 2):
        nop(2)
        A(f"v_add_f32_dpp v20, v20, v20 row_ror:{sh} row_mask:0xf bank_mask:0xf")
    A("v_cvt_pk_bf16_f32 v20, v20, v20")
    A("s_mov_b64 exec, s[54:55]")
    A("buffer_store_short v20, v12, s[44:47], s65 offen")
    A("s_mov_b64 exec, -1")
    A("s_branch L_fin_stamp")
    A("L_updater:")
    A(f"s_mov_b32 s64, {WS_FG}")
    A(f"s_mov_b32 s65, {WS_FG + 112*4096}")
    A(f"s_mov_b32 s66, {SPIN_MAX}")
    A("L_upd_poll:")
    for t in range(4):
        A(f"buffer_load_dwordx4 v[{20+4*t}:{23+4*t}], v14, s[40:43], s64 offen offset:{t*1024} sc1")
    for t in range(4):
        A(f"buffer_load_dwordx4 v[{36+4*t}:{39+4*t}], v14, s[40:43], s65 offen offset:{t*1024} sc1")
    A("s_waitcnt vmcnt(0)")
    tagcheck(list(range(21, 52, 2)), "L_upd_ok", "L_upd_poll", sleep)
    A("L_upd_ok:")
    A("v_mov_b32 v16, s50")
    A("v_mov_b32 v17, 0")
    A("s_mov_b64 exec, 1")
    A(f"buffer_store_dword v16, v17, s[40:43], 0 offen offset:{WS_EPOCH} sc1")
    A("s_mov_b64 exec, -1")
    A("L_fin_stamp:")
    if stamps:
        stamp(7)
        dump_stamps(0)
        A("s_cmp_lt_u32 s2, 16")
        A("s_cbranch_scc0 L_end")
        A("s_mov_b32 s44, s26")
        A("s_mov_b32 s45, s27")
        A("s_mov_b32 s46, 256")
        A("s_mov_b32 s47, 0x20000")
        A(f"s_sub_u32 s92, {SPIN_MAX}, s92")
        A(f"s_sub_u32 s66, {SPIN_MAX}, s66")
        A("v_mov_b32 v20, s92")
        A("v_mov_b32 v21, s66")
        A("s_lshl_b32 s64, s2, 3")
        A("s_mov_b64 exec, 1")
        A("buffer_store_dwordx2 v[20:21], v16, s[44:47], s64 offen")
    A("L_end:")
    A("s_endpgm")
    A('.section .rodata,"a"')
    A(".p2align 6")
    A(f".amdhsa_kernel {NAME}_kernel")
    A("  .amdhsa_next_free_vgpr 168")
    A("  .amdhsa_next_free_sgpr 96")
    A("  .amdhsa_accum_offset 168")
    A("  .amdhsa_group_segment_fixed_size 0")
    A("  .amdhsa_kernarg_size 104")
    A("  .amdhsa_user_sgpr_count 2")
    A("  .amdhsa_user_sgpr_kernarg_segment_ptr 1")
    A("  .amdhsa_system_sgpr_workgroup_id_x 1")
    A(".end_amdhsa_kernel")
    return "\n".join(L) + "\n"

if __name__ == "__main__":
    open("k2.s", "w").write(gen())
    open("k2_st.s", "w").write(gen(stamps=True))
    open("k2d.s", "w").write(gen(dual=True))
    open("k2d_st.s", "w").write(gen(stamps=True, dual=True))
    open("k2w8_st.s", "w").write(gen(stamps=True, win=8))
    open("k2w3_st.s", "w").write(gen(stamps=True, win=3))
```
